```python
import torch

def _softmax(x, axis=-1):
    return torch.softmax(x, dim=axis)
def _gelu(x):
    return torch.nn.functional.gelu(x, approximate="tanh")
def _silu(x):
    return torch.nn.functional.silu(x)
def _sigmoid(x):
    return torch.sigmoid(x)
def _layernorm(x, axis=-1, eps=1e-5):
    m = x.mean(dim=axis, keepdim=True)
    v = x.var(dim=axis, keepdim=True, unbiased=False)
    return (x - m) / torch.sqrt(v + eps)
def _scatter_add(tgt, idx, src, axis=0):
    return tgt.clone().index_add_(axis, idx, src)
def _segment_sum(src, seg, n):
    out = torch.zeros((n,) + src.shape[1:], dtype=src.dtype)
    return out.index_add_(0, seg, src)
def _pad(x, pw):
    flat = tuple(v for pair in reversed(pw) for v in pair)
    return torch.nn.functional.pad(x, flat)

kernel_name = 'standalone__low_rank_proj_linformer__decode'

def setup_inputs():

    _w = (lambda a: (lambda t: t.to(torch.bfloat16) if t.is_floating_point() else t)(torch.as_tensor(a)))
    B, H, Sq, Skv, Dh, R = 2, 16, 1, 8192, 256, 16
    return {
        "q": _w((lambda *s: torch.randn(*s, dtype=torch.bfloat16) * 0.8)(B, H, Sq, Dh)),
        "k": _w((lambda *s: torch.randn(*s, dtype=torch.bfloat16) * 0.8)(B, H, Skv, Dh)),
        "v": _w((lambda *s: torch.randn(*s, dtype=torch.bfloat16) * 0.05)(B, H, Skv, Dh)),
        "e_proj": _w((lambda *s: torch.randn(*s, dtype=torch.bfloat16) * 0.8)(R, Skv) * (Skv ** -0.5)),
        "f_proj": _w((lambda *s: torch.randn(*s, dtype=torch.bfloat16) * 0.05)(R, Skv) * (Skv ** -0.5)),
    }

def reference(q, k, v, e_proj, f_proj):
    B, H, Sq, Dh = q.shape
    kp = torch.einsum("rn,bhnd->bhrd", e_proj, k)
    vp = torch.einsum("rn,bhnd->bhrd", f_proj, v)
    scores = torch.einsum("bhqd,bhrd->bhqr", q, kp) * (Dh ** -0.5)
    p = _softmax(scores, axis=-1)
    o = torch.einsum("bhqr,bhrd->bhqd", p, vp)
    return o
```

```python
import sys
src, out, B, red, k = sys.argv[1], sys.argv[2], int(sys.argv[3]), sys.argv[4], int(sys.argv[5])
s = open(src).read()
N = "standalone__low_rank_proj_linformer__decode_kernel"
import re
m = re.search(r"; @launch (grid=\S+ block=\S+ lds=\d+)", s)
l1 = f"; @launch kernel={N} {m.group(1)}"
l2 = "; @launch kernel=probe_kernel grid=(1,1,1) block=(64,1,1) lds=0"
s = s.replace(m.group(0), l1 + "\n" + l2)
op = "v_max_u32" if red == "max" else "v_min_u32"
L = []
e = L.append
e(".text")
e(".globl probe_kernel")
e(".p2align 8")
e(".type probe_kernel,@function")
e("probe_kernel:")
e("  s_cmp_ge_u32 s2, 1")
e("  s_cbranch_scc1 P_end")
e("  s_load_dwordx2 s[4:5], s[0:1], 56")
e("  v_mul_u32_u24 v1, 80, v0")
e("  s_waitcnt lgkmcnt(0)")
e("  s_add_u32 s4, s4, 0x4000000")
e("  s_addc_u32 s5, s5, 0")
for j in range(4):
    e(f"  v_add_u32 v2, {j*64*80}, v1")
    e(f"  global_load_dword v{10+j}, v2, s[4:5] sc1")
    e(f"  global_load_dword v{20+j}, v2, s[4:5] offset:{8*B} sc1")
e("  s_waitcnt vmcnt(0)")
for j in range(1, 4):
    e(f"  v_min_u32 v10, v10, v{10+j}")
    e(f"  {op} v20, v20, v{20+j}")
e("  s_nop 4")
e("  v_readlane_b32 s8, v10, 0")
e("  v_readlane_b32 s9, v20, 0")
sop = "s_max_u32" if red == "max" else "s_min_u32"
for l in range(1, 64):
    e(f"  v_readlane_b32 s10, v10, {l}")
    e(f"  v_readlane_b32 s11, v20, {l}")
    e("  s_nop 1")
    e("  s_min_u32 s8, s8, s10")
    e(f"  {sop} s9, s9, s11")
e("  s_sub_u32 s9, s9, s8")
e("  s_min_u32 s9, s9, 20000")
e(f"  s_mul_i32 s9, s9, {k}")
e("  s_memrealtime s[12:13]")
e("  s_waitcnt lgkmcnt(0)")
e("P_loop:")
e("  s_memrealtime s[14:15]")
e("  s_waitcnt lgkmcnt(0)")
e("  s_sub_u32 s16, s14, s12")
e("  s_cmp_lt_u32 s16, s9")
e("  s_cbranch_scc1 P_loop")
e("P_end:")
e("  s_endpgm")
e('.section .rodata,"a"')
e(".p2align 6")
e(".amdhsa_kernel probe_kernel")
e("  .amdhsa_next_free_vgpr 32")
e("  .amdhsa_next_free_sgpr 32")
e("  .amdhsa_accum_offset 32")
e("  .amdhsa_group_segment_fixed_size 0")
e("  .amdhsa_kernarg_size 64")
e("  .amdhsa_user_sgpr_count 2")
e("  .amdhsa_user_sgpr_kernarg_segment_ptr 1")
e("  .amdhsa_system_sgpr_workgroup_id_x 1")
e(".end_amdhsa_kernel")
open(out, "w").write(s + "\n".join(L) + "\n")
```

```python
import sys
src, out, B, red, k = sys.argv[1], sys.argv[2], int(sys.argv[3]), sys.argv[4], int(sys.argv[5])
s = open(src).read()
N = "standalone__low_rank_proj_linformer__decode_kernel"
import re
m = re.search(r"; @launch (grid=\S+ block=\S+ lds=\d+)", s)
l1 = f"; @launch kernel={N} {m.group(1)}"
l2 = "; @launch kernel=probe_kernel grid=(1,1,1) block=(64,1,1) lds=0"
s = s.replace(m.group(0), l1 + "\n" + l2)
op = {"max": "v_max_u32", "min": "v_min_u32", "avg": "v_add_u32"}[red]
L = []
e = L.append
e(".text")
e(".globl probe_kernel")
e(".p2align 8")
e(".type probe_kernel,@function")
e("probe_kernel:")
e("  s_cmp_ge_u32 s2, 1")
e("  s_cbranch_scc1 P_end")
e("  s_load_dwordx2 s[4:5], s[0:1], 56")
e("  v_mul_u32_u24 v1, 80, v0")
e("  s_waitcnt lgkmcnt(0)")
e("  s_add_u32 s4, s4, 0x4000000")
e("  s_addc_u32 s5, s5, 0")
for j in range(4):
    e(f"  v_add_u32 v2, {j*64*80}, v1")
    e(f"  global_load_dword v{10+j}, v2, s[4:5] sc1")
    e(f"  global_load_dword v{20+j}, v2, s[4:5] offset:{8*B} sc1")
e("  s_waitcnt vmcnt(0)")
for j in range(1, 4):
    e(f"  v_min_u32 v10, v10, v{10+j}")
    e(f"  {op} v20, v20, v{20+j}")
e("  s_nop 4")
e("  v_readlane_b32 s8, v10, 0")
e("  v_readlane_b32 s9, v20, 0")
sop = {"max": "s_max_u32", "min": "s_min_u32", "avg": "s_add_u32"}[red]
for l in range(1, 64):
    e(f"  v_readlane_b32 s10, v10, {l}")
    e(f"  v_readlane_b32 s11, v20, {l}")
    e("  s_nop 1")
    e("  s_min_u32 s8, s8, s10")
    e(f"  {sop} s9, s9, s11")
if red == "avg":
    e("  s_lshl_b32 s8, s8, 8")
    e("  s_sub_u32 s9, s9, s8")
    e(f"  s_mul_i32 s9, s9, {k}")
    e("  s_lshr_b32 s9, s9, 8")
    k = 1
else:
    e("  s_sub_u32 s9, s9, s8")
e("  s_min_u32 s9, s9, 20000")
e(f"  s_mul_i32 s9, s9, {k}")
e("  s_memrealtime s[12:13]")
e("  s_waitcnt lgkmcnt(0)")
e("P_loop:")
e("  s_memrealtime s[14:15]")
e("  s_waitcnt lgkmcnt(0)")
e("  s_sub_u32 s16, s14, s12")
e("  s_cmp_lt_u32 s16, s9")
e("  s_cbranch_scc1 P_loop")
e("P_end:")
e("  s_endpgm")
e('.section .rodata,"a"')
e(".p2align 6")
e(".amdhsa_kernel probe_kernel")
e("  .amdhsa_next_free_vgpr 32")
e("  .amdhsa_next_free_sgpr 32")
e("  .amdhsa_accum_offset 32")
e("  .amdhsa_group_segment_fixed_size 0")
e("  .amdhsa_kernarg_size 64")
e("  .amdhsa_user_sgpr_count 2")
e("  .amdhsa_user_sgpr_kernarg_segment_ptr 1")
e("  .amdhsa_system_sgpr_workgroup_id_x 1")
e(".end_amdhsa_kernel")
open(out, "w").write(s + "\n".join(L) + "\n")
```
